```python
import torch

def _softmax(x, axis=-1):
    return torch.softmax(x, dim=axis)
def _gelu(x):
    return torch.nn.functional.gelu(x, approximate="tanh")
def _silu(x):
    return torch.nn.functional.silu(x)
def _sigmoid(x):
    return torch.sigmoid(x)
def _layernorm(x, axis=-1, eps=1e-5):
    m = x.mean(dim=axis, keepdim=True)
    v = x.var(dim=axis, keepdim=True, unbiased=False)
    return (x - m) / torch.sqrt(v + eps)
def _scatter_add(tgt, idx, src, axis=0):
    return tgt.clone().index_add_(axis, idx, src)
def _segment_sum(src, seg, n):
    out = torch.zeros((n,) + src.shape[1:], dtype=src.dtype)
    return out.index_add_(0, seg, src)
def _pad(x, pw):
    flat = tuple(v for pair in reversed(pw) for v in pair)
    return torch.nn.functional.pad(x, flat)

kernel_name = 'recurrent_scan__mha_block_cached__mixer_channel_mlp__prompt'

def setup_inputs():

    _w = (lambda a: (lambda t: t.to(torch.bfloat16) if t.is_floating_point() else t)(torch.as_tensor(a)))
    def _A_setup():
        B, Sq, D = 1, 2048, 512
        H, Sk, Dh = 32, 2048, 128
        return {
            "x": _w((lambda *s: torch.randn(*s, dtype=torch.bfloat16) * 0.05)(B, Sq, D)),
            "k_cache": _w((lambda *s: torch.randn(*s, dtype=torch.bfloat16) * 1.6)(B, H, Sk, Dh)),
            "v_cache": _w((lambda *s: torch.randn(*s, dtype=torch.bfloat16) * 0.8)(B, H, Sk, Dh)),
            "wq": _w((lambda *s: torch.randn(*s, dtype=torch.bfloat16) * 1.6)(D, H * Dh) * (D ** -0.5)),
            "wo": _w((lambda *s: torch.randn(*s, dtype=torch.bfloat16) * 0.8)(H * Dh, D) * ((H * Dh) ** -0.5)),
        }
    _A_in = _A_setup()

    def _B_setup():
        B, S, D, F = 1, 2048, 512, 1792
        return {
            "x": _w((lambda *s: torch.randn(*s, dtype=torch.bfloat16) * 0.05)(B, S, D)),
            "w1": _w((lambda *s: torch.randn(*s, dtype=torch.bfloat16) * 1.6)(D, F) * (D ** -0.5)),
            "b1": _w((lambda *s: torch.randn(*s, dtype=torch.bfloat16) * 0.8)(F)),
            "w2": _w((lambda *s: torch.randn(*s, dtype=torch.bfloat16) * 0.2)(F, D) * (F ** -0.5)),
            "b2": _w((lambda *s: torch.randn(*s, dtype=torch.bfloat16) * 0.2)(D)),
        }
    _B_in = _B_setup()

    return {
        "A_x": _A_in["x"],
        "A_k_cache": _A_in["k_cache"],
        "A_v_cache": _A_in["v_cache"],
        "A_wq": _A_in["wq"],
        "A_wo": _A_in["wo"],
        "B_x": _B_in["x"],
        "B_w1": _B_in["w1"],
        "B_b1": _B_in["b1"],
        "B_w2": _B_in["w2"],
        "B_b2": _B_in["b2"],
    }

def reference(A_x, A_k_cache, A_v_cache, A_wq, A_wo, B_x, B_w1, B_b1, B_w2, B_b2):
    def _A_ref(x, k_cache, v_cache, wq, wo):
        B, Sq, D = x.shape
        H, Dh = 32, 128
        q = (lambda x, *d: x.permute(*d))((x @ wq).reshape(B, Sq, H, Dh), 0, 2, 1, 3)
        scores = torch.einsum("bhqd,bhkd->bhqk", q, k_cache) * (Dh ** -0.5)
        p = _softmax(scores, axis=-1)
        o = torch.einsum("bhqk,bhkd->bhqd", p, v_cache)
        return (lambda x, *d: x.permute(*d))(o, 0, 2, 1, 3).reshape(B, Sq, H * Dh) @ wo

    def _B_ref(x, w1, b1, w2, b2):
        y = _layernorm(x, axis=-1)
        h = _gelu(torch.einsum("bsd,df->bsf", y, w1) + b1)
        return torch.einsum("bsf,fd->bsd", h, w2) + b2

    x = A_x
    xn = _layernorm(x, axis=-1)
    s = _A_ref(xn, A_k_cache, A_v_cache, A_wq, A_wo)
    g = _silu(_B_ref(xn, B_w1, B_b1, B_w2, B_b2))
    return x + s * g
```

```python
import re

REG_RE = re.compile(r'^(-|abs\()?([vas])(?:(\d+)|\[(\d+):(\d+)\])\)?$')


def regs_of(op):
    op = op.strip()
    op = op.strip('|')
    m = REG_RE.match(op)
    if m:
        k = m.group(2)
        if m.group(3) is not None:
            return [(k, int(m.group(3)))]
        return [(k, i) for i in range(int(m.group(4)), int(m.group(5)) + 1)]
    if op == 'vcc':
        return [('x', 'vcc')]
    if op == 'exec':
        return [('x', 'exec')]
    if op == 'm0':
        return [('x', 'm0')]
    return []


TRANS = ('v_exp_f32', 'v_log_f32', 'v_rcp_f32', 'v_rsq_f32', 'v_sqrt_f32', 'v_sin_f32', 'v_cos_f32')


class Ins:
    def __init__(self, text):
        self.text = text
        t = text.split(';')[0].strip()
        self.label = t.endswith(':')
        self.directive = t.startswith('.')
        parts = t.split(None, 1)
        self.op = parts[0] if parts else ''
        rest = parts[1] if len(parts) > 1 else ''
        ops = [o.strip() for o in rest.split(',')] if rest else []
        if ops:
            last = ops[-1].split()
            self.mods = last[1:]
            ops[-1] = last[0] if last else ''
        else:
            self.mods = []
        self.ops = ops
        self.defs, self.uses = set(), set()
        self.srcc = set()
        self.srcab = set()
        op = self.op
        self.is_mfma = op.startswith('v_mfma') or op.startswith('v_smfmac')
        self.is_valu = op.startswith('v_') and not self.is_mfma
        self.is_trans = op.replace('_e32', '').replace('_e64', '') in TRANS
        self.is_salu = op.startswith('s_')
        self.is_ds = op.startswith('ds_')
        self.is_vmem = op.startswith('buffer_') or op.startswith('global_')
        self.is_dma = self.is_vmem and ('lds' in self.mods or 'load_lds' in op)
        self.is_store = self.is_vmem and ('store' in op or 'atomic' in op)
        self.passes = 0
        if self.label or self.directive or not op:
            return
        R = lambda i: set(regs_of(ops[i])) if i < len(ops) else set()
        allr = lambda a: set().union(*[set(regs_of(o)) for o in a]) if a else set()
        if self.is_mfma:
            self.passes = 8 if ('32x32' in op or 'smfmac' in op) else 4
            self.defs = R(0)
            if op.startswith('v_smfmac'):
                self.srcab = R(1) | R(2) | R(3)
                self.srcc = R(0)
            else:
                self.srcab = R(1) | R(2)
                self.srcc = R(3)
            self.uses = self.srcab | self.srcc
        elif self.is_valu:
            if op.startswith('v_cmp'):
                self.defs = R(0)
                self.uses = allr(ops[1:])
            elif op.startswith('v_permlane') and 'swap' in op:
                self.defs = R(0) | R(1)
                self.uses = R(0) | R(1)
            elif op.startswith(('v_add_co', 'v_sub_co', 'v_addc_co', 'v_subb_co')):
                self.defs = R(0) | R(1)
                self.uses = allr(ops[2:])
            else:
                self.defs = R(0)
                self.uses = allr(ops[1:])
                if op.startswith(('v_fmac', 'v_dot2c', 'v_writelane')):
                    self.uses |= R(0)
        elif self.is_ds:
            if op.startswith('ds_read') or op.startswith('ds_bpermute') or op.startswith('ds_swizzle'):
                self.defs = R(0)
                self.uses = allr(ops[1:])
            else:
                self.uses = allr(ops)
        elif self.is_vmem:
            if self.is_dma:
                self.uses = allr(ops) | {('x', 'm0')}
            elif 'load' in op:
                self.defs = R(0)
                self.uses = allr(ops[1:])
            elif 'atomic' in op and 'sc0' in self.mods and op.startswith('global'):
                self.defs = R(0)
                self.uses = allr(ops[1:])
            else:
                self.uses = allr(ops)
        elif self.is_salu:
            if op.startswith(('s_cmp', 's_cbranch', 's_branch', 's_waitcnt', 's_barrier', 's_nop', 's_endpgm',
                              's_sleep', 's_setprio', 's_bitcmp')):
                self.uses = allr(ops)
            else:
                self.defs = R(0)
                self.uses = allr(ops[1:])
                if 'saveexec' in op:
                    self.defs |= {('x', 'exec')}

    def states(self):
        if self.label or self.directive or not self.op:
            return 0
        if self.op == 's_nop':
            return int(self.ops[0], 0) + 1
        return 1


def store_data(ins):
    if ins.op.startswith('buffer_store'):
        return set(regs_of(ins.ops[0]))
    if ins.op.startswith('global_store'):
        return set(regs_of(ins.ops[1]))
    return set()


def need(p, c):
    n = 0
    if p.is_mfma:
        d = p.defs
        big = p.passes == 8
        if c.is_mfma:
            if c.srcab & d:
                n = max(n, 12 if big else 8)
            if c.srcc & d and not (c.srcc == d and c.passes == p.passes):
                n = max(n, 10 if big else 6)
            if (c.defs & d) and not (c.srcc == d and c.defs == d):
                n = max(n, 10 if big else 6)
        else:
            if (c.uses | c.defs) & d:
                n = max(n, 12 if big else 8)
            if c.is_valu and (c.defs & p.srcc):
                n = max(n, 7 if big else 3)
    elif p.is_valu:
        vd = {r for r in p.defs if r[0] in 'va'}
        sd = {r for r in p.defs if r[0] == 's' or r == ('x', 'vcc')}
        if c.is_mfma and (c.uses & vd):
            n = max(n, 2)
        if p.is_trans and c.is_valu and not c.is_trans and (c.uses & vd):
            n = max(n, 1)
        if c.op.startswith(('v_readlane', 'v_readfirstlane')) and (c.uses & vd):
            n = max(n, 1)
        if c.op.startswith('v_permlane') and (c.uses & vd):
            n = max(n, 2)
        if 'dpp' in c.text and c.is_valu and (c.uses & vd):
            n = max(n, 2)
        if c.is_valu and (c.uses & sd):
            n = max(n, 2)
        if c.is_valu and ('x', 'vcc') in sd and c.op.startswith('v_cndmask'):
            n = max(n, 2)
        if c.is_vmem and (c.uses & sd):
            n = max(n, 5)
        if p.op.startswith('v_dot2') and (c.uses | c.defs) & vd:
            same = c.op == p.op
            if same and not (set().union(*[set(regs_of(o)) for o in c.ops[1:3]]) & vd):
                pass
            else:
                n = max(n, 3)
    elif p.is_salu:
        if ('x', 'm0') in p.defs and c.is_dma:
            n = max(n, 1)
    if p.is_vmem and p.is_store and ('x3' in p.op or 'x4' in p.op):
        if c.defs & store_data(p):
            n = max(n, 2 if c.is_valu else 1)
    return n


def check_linear(ins_list, what=''):
    errs = []
    L = [i for i in ins_list if i.states() > 0]
    for a in range(len(L)):
        p = L[a]
        dist = 0
        for b in range(a + 1, min(a + 24, len(L))):
            c = L[b]
            n = need(p, c)
            if n > dist:
                errs.append(f'{what}: need {n} have {dist}: [{p.text.strip()}] -> [{c.text.strip()}]')
            dist += c.states()
            if dist >= 20:
                break
    return errs


class Asm:
    def __init__(self):
        self.ins = []

    def __call__(self, text):
        for line in text.split('\n'):
            line = line.strip()
            if line:
                self.ins.append(Ins(line))

    def text(self):
        out = []
        for i in self.ins:
            out.append(i.text if (i.label or i.directive) else '    ' + i.text)
        return '\n'.join(out) + '\n'

    def check(self):
        errs = check_linear(self.ins, 'linear')
        labels = {i.text.split(';')[0].strip()[:-1]: k for k, i in enumerate(self.ins) if i.label}
        for k, i in enumerate(self.ins):
            if i.op.startswith(('s_cbranch', 's_branch')):
                tgt = labels.get(i.ops[0])
                if tgt is None:
                    errs.append('missing label ' + i.ops[0])
                    continue
                seq = self.ins[max(0, k - 30):k + 1] + self.ins[tgt:tgt + 30]
                errs += check_linear(seq, 'edge->' + i.ops[0])
        return sorted(set(errs))


def kd(name, vgpr, sgpr, accum, extra=''):
    return f""".section .rodata,"a"
.p2align 6
.amdhsa_kernel {name}
  .amdhsa_next_free_vgpr {vgpr}
  .amdhsa_next_free_sgpr {sgpr}
  .amdhsa_accum_offset {accum}
  .amdhsa_group_segment_fixed_size 0
  .amdhsa_kernarg_size 104
  .amdhsa_user_sgpr_count 2
  .amdhsa_user_sgpr_kernarg_segment_ptr 1
  .amdhsa_system_sgpr_workgroup_id_x 1
{extra}.end_amdhsa_kernel
"""
```

```python
import sys
from asmlib import *

NAME = 'recurrent_scan__mha_block_cached__mixer_channel_mlp__prompt'
vr = lambda b, n: f'v[{b}:{b + n - 1}]'
ar = lambda b, n: f'a[{b}:{b + n - 1}]'
MF = 'v_mfma_f32_16x16x32_bf16'
SM = 'v_smfmac_f32_16x16x64_bf16'

NB = 184
WS_AF = 0
WS_WF = 32 * NB * 4096
WS_END = WS_WF + 8 * NB * 4096
WS_T = 64 << 20

KBASE, VBASE = 0, 65536
XBASE, WBASE, WSLOT = 0, 65536, 24576
RLBASE = 131072
CSBASE = 114688
FLAG = RLBASE
LDS1 = 163840

OPT = dict(stamps=0)

Q = lambda qt, ds: (ds * 4 + qt) * 4
S = lambda par, kt, qt: 64 + ((par * 4 + qt) * 2 + kt) * 4
P = lambda par, qt: 128 + (qt * 2 + par) * 4
NEGM = lambda qt: 160 + qt * 4
AK = lambda ds: 192 + ds
AV = lambda dt: 196 + dt
VK, VV, L16, IDX, ONES = 204, 205, 206, 207, 208
XD = lambda i: 212 + i
WQD = lambda i: 220 + i
W1D = lambda i: 224 + i
XA = lambda ks: 226 + ks
WQA = lambda ds: 228 + ds
W1A = lambda nt: 232 + nt
T0 = 236
O = lambda qt, dt: (qt * 8 + dt) * 4
LACC = lambda qt: 128 + qt * 4
KF = lambda kt, ds: 192 + (kt * 4 + ds) * 4
VF = lambda dt: 224 + dt * 4
ACCQ = lambda ds, qt, tau: ((ds * 4 + qt) * 2 + tau) * 4
ACCH = lambda m, qt, tau: 128 + ((m * 4 + qt) * 2 + tau) * 4
XF = lambda qt, par: 128 + (qt * 2 + par) * 4
WF = lambda t, par: 160 + (t * 2 + par) * 4
SX = lambda qt: qt * 4
SXX = lambda qt: 16 + qt * 4
CS = lambda i: 32 + i * 4
ACC = lambda t, qt: ACCQ(t >> 1, qt, t & 1) if t < 8 else ACCH((t - 8) >> 1, qt, t & 1)

sK, sV, sWS, sX, sWQ, sW1, sAUX = 4, 8, 12, 16, 20, 24, 28
srd = lambda b: f's[{b}:{b + 3}]'
sHEAD, sWAVE, sJ, sKM, sVM, sOFF, sCNT, sAF, sMODE = 32, 33, 34, 35, 36, 37, 38, 39, 40
sXM, sWM, sW1M, sXO, sWQO, sW1O, sT, sT2, sRL = 41, 42, 43, 44, 45, 46, 47, 48, 49
sPTR = 52

PATS = [
    'bt|e|tc|tt|e|tt|e|tc|e|tt|e|tc|e|tt|e|tc|e|tt|e|tc|e|s|e|c|e|m|e|c|e|m|e|cw',
    'e|D|e|Dc|e|D|e|Dc|e|D|e|Dc|e|D|e|Dc|e|m|e|c|e|m|e|c|e|s|e|c|e||e|cw',
    'tt|e|tt|e|tc|tt|e|tt|e|tc|e|tt|e|tc|e|tt|e|tc|e||e|c|e|m|e|c|e|m|e|c|e||e|cw',
    'e|D|e|Dc|e|D|e|Dc|e|D|e|Dc|e|D|e|Dc|e|m|e|c|e|m|e|c|e|s|e|c|e||e|c|e|W']
E0 = 49
SMPOS = [(2, 8), (2, 16), (3, 8), (3, 16)]


def stamp(a, i):
    if OPT['stamps']:
        a(f's_memtime s[{72 + 4 * i}:{73 + 4 * i}]')
        a(f's_memrealtime s[{74 + 4 * i}:{75 + 4 * i}]')
        a('s_waitcnt lgkmcnt(0)')


def dump_stamps(a, n, base):
    if not OPT['stamps']:
        return
    a('s_waitcnt vmcnt(0) lgkmcnt(0)')
    stamp(a, n - 1)
    a(f's_lshl_b32 s{sT}, s2, 2')
    a(f's_add_u32 s{sT}, s{sT}, s{sWAVE}')
    a(f's_lshl_b32 s{sT}, s{sT}, 7')
    a(f's_add_u32 s{sT}, s{sT}, {base}')
    a(f's_mov_b32 s{sWS + 2}, 0x10000000')
    a('v_mov_b32 v100, 0')
    for i in range(4 * n):
        a(f'v_mov_b32 v{64 + i}, s{72 + i}')
    for i in range(n):
        a(f'buffer_store_dwordx4 {vr(64 + 4 * i, 4)}, v100, {srd(sWS)}, s{sT} offen offset:{16 * i}')
    a('s_waitcnt vmcnt(0)')


def exp_op(k):
    par = 1 - (k >> 5)
    qt, e = (k >> 3) & 3, k & 7
    r = S(par, e >> 2, qt) + (e & 3)
    return f'v_exp_f32 v{r}, v{r}'


def cvt_op(k):
    par = 1 - (k >> 5)
    qt, e = (k >> 3) & 3, k & 7
    r = S(par, e >> 2, qt) + (e & 3)
    return f'v_cvt_pk_bf16_f32 v{P(par, qt) + (e >> 1)}, v{r - 1}, v{r}'


def qk_mfmas(par, czero=False):
    out = []
    for qt in range(4):
        for kt in range(2):
            for ds in range(4):
                c = vr(S(par, kt, qt), 4) if ds else ('0' if czero else vr(NEGM(qt), 4))
                out.append(f'{MF} {vr(S(par, kt, qt), 4)}, {ar(KF(kt, ds), 4)}, {vr(Q(qt, ds), 4)}, {c}')
    return out


def pv_mfmas(par):
    return [f'{MF} {ar(O(qt, dt), 4)}, {ar(VF(dt), 4)}, {vr(P(par, qt), 4)}, {ar(O(qt, dt), 4)}'
            for qt in range(4) for dt in range(8)]


def k_reads(slot, s):
    return [f'ds_read_b128 {ar(KF(kt, ds), 4)}, v{AK(ds)} offset:{slot * 16384 + (2 * s + kt) * 1024}'
            for kt in range(2) for ds in range(4)]


def v_reads(slot, s):
    return [f'ds_read_b64_tr_b16 {ar(VF(dt) + 2 * u, 2)}, v{AV(dt)} offset:{slot * 16384 + (8 * s + 4 * u) * 256}'
            for dt in range(8) for u in range(2)]


def schedule(u):
    groups = [qk_mfmas(1), pv_mfmas(0), qk_mfmas(0), pv_mfmas(1)]
    for qt, (g, pos) in sorted(enumerate(SMPOS), key=lambda x: -x[1][1]):
        groups[g].insert(pos, f'{SM} {ar(LACC(qt), 4)}, {vr(ONES, 4)}, {vr(P(0, qt), 8)}, v{IDX}')
    reads = [v_reads(u, 0), k_reads((u + 1) % 4, 0), v_reads(u, 1), k_reads((u + 1) % 4, 1)]
    dmas = [f'buffer_load_dwordx4 v{VV}, {srd(sV)}, s{sOFF} offen offset:{i * 1024} lds' for i in range(4)]
    dmas += [f'buffer_load_dwordx4 v{VK}, {srd(sK)}, s{sOFF} offen offset:{i * 1024} lds' for i in range(4)]
    scal = [f's_add_u32 m0, s{sVM}, {((u + 3) % 4) * 16384}', f's_add_u32 m0, s{sKM}, {u * 16384}',
            f's_add_u32 s{sOFF}, s{sOFF}, 16384']
    ek = ck = E0
    out = []
    for g in range(4):
        pat = PATS[g].split('|')
        assert len(pat) == len(groups[g])
        for m, p in zip(groups[g], pat):
            fl = []
            for ch in p:
                if ch == 'e':
                    fl.append(('e', exp_op(ek % 64), ek))
                    ek += 1
                elif ch == 'c':
                    assert ck < ek
                    fl.append(('c', cvt_op(ck % 64), ck))
                    ck += 2
                elif ch in 'tD':
                    fl.append(('r', reads[g].pop(0), g))
                elif ch == 'm':
                    fl.append(('m', dmas.pop(0), 0))
                elif ch == 's':
                    fl.append(('s', scal.pop(0), 0))
                elif ch == 'w':
                    fl.append(('w', 's_waitcnt lgkmcnt(0)', 0))
                elif ch == 'W':
                    fl.append(('w', 's_waitcnt vmcnt(16) lgkmcnt(0)', 0))
                elif ch == 'b':
                    fl.append(('b', 's_barrier', 0))
            out.append((m, g, fl))
        assert not reads[g]
    assert ek == E0 + 64 and ck == E0 + 64 and not dmas and not scal
    return out


def iteration(a, u, last=False, only_tail=False):
    for m, g, fl in schedule(u):
        emit_m = not only_tail and not (last and g == 2 and 'smfmac' not in m)
        if emit_m:
            a(m)
        for kind, text, tag in fl:
            if kind in 'ec':
                nxt = 96 <= tag < 128
                if (only_tail and not nxt) or (last and nxt):
                    continue
            elif kind == 'r':
                if (only_tail and tag != 3) or (last and tag in (1, 3)):
                    continue
            elif kind in 'ms':
                if only_tail or last:
                    continue
            elif kind == 'b':
                if only_tail:
                    continue
            elif kind == 'w':
                if only_tail or (last and 'vmcnt' in text):
                    continue
            a(text)
            if not emit_m and kind == 'e':
                a('s_nop 0')
            if not emit_m and kind == 'c':
                a('s_nop 1')


def xlane(a, op, r, t):
    a(f'v_mov_b32 v{t}, v{r}')
    a('s_nop 1')
    a(f'v_permlane32_swap_b32 v{r}, v{t}')
    a(f'{op} v{r}, v{r}, v{t}')
    a(f'v_mov_b32 v{t}, v{r}')
    a('s_nop 1')
    a(f'v_permlane16_swap_b32 v{r}, v{t}')
    a(f'{op} v{r}, v{r}, v{t}')


def kv_dma(kind, tile):
    reg, sr, mb = (VK, sK, sKM) if kind == 'K' else (VV, sV, sVM)
    out = [f's_add_u32 m0, s{mb}, {(tile % 4) * 16384}', f's_mov_b32 s{sT}, {tile * 16384}']
    out += [f'buffer_load_dwordx4 v{reg}, {srd(sr)}, s{sT} offen offset:{i * 1024} lds' for i in range(4)]
    return out


def p1_reads(slot, ks):
    out = []
    for t in [2, 3, 4, 5, 6, 7, 10, 11, 0, 1, 8, 9]:
        for u in range(2):
            if t < 8:
                off = slot * WSLOT + (32 * ks + 4 * u) * 256 + (t & 1) * 8
                out.append(f'ds_read_b64_tr_b16 {ar(WF(t, ks) + 2 * u, 2)}, v{WQA(t >> 1)} offset:{off}')
            else:
                off = slot * WSLOT + (32 * ks + 4 * u) * 128
                out.append(f'ds_read_b64_tr_b16 {ar(WF(t, ks) + 2 * u, 2)}, v{W1A(t - 8)} offset:{off}')
    for qt in range(4):
        out.append(f'ds_read_b128 {ar(XF(qt, ks), 4)}, v{XA(ks)} offset:{slot * 32768 + qt * 2048}')
    return out


def p1_mfmas(ks):
    out = []
    if ks == 1:
        for qt in range(4):
            out.append(f'{SM} {ar(SX(qt), 4)}, {vr(ONES, 4)}, {ar(XF(qt, 0), 8)}, v{IDX}')
        for i, t in enumerate([0, 1, 8, 9]):
            out.append(f'{SM} {ar(CS(i), 4)}, {vr(ONES, 4)}, {ar(WF(t, 0), 8)}, v{IDX}')
    for qt in range(4):
        for t in range(12):
            out.append(f'{MF} {vr(ACC(t, qt), 4)}, {ar(WF(t, ks), 4)}, {ar(XF(qt, ks), 4)}, {vr(ACC(t, qt), 4)}')
        out.append(f'{MF} {ar(SXX(qt), 4)}, {ar(XF(qt, ks), 4)}, {ar(XF(qt, ks), 4)}, {ar(SXX(qt), 4)}')
    return out


def p1_dma(slot):
    out = []
    out.append((f's_add_u32 m0, s{sWM}, {slot * WSLOT}', 0))
    for i in range(4):
        out.append((f'buffer_load_dwordx4 v{WQD(i)}, {srd(sWQ)}, s{sWQO} offen offset:{i * 1024} lds', 1))
    out.append((f's_add_u32 m0, s{sW1M}, {slot * WSLOT}', 0))
    for i in range(2):
        out.append((f'buffer_load_dwordx4 v{W1D(i)}, {srd(sW1)}, s{sW1O} offen offset:{i * 1024} lds', 1))
    for h in range(2):
        out.append((f's_add_u32 m0, s{sXM}, {slot * 32768 + h * 4096}', 0))
        for i in range(4):
            out.append((f'buffer_load_dwordx4 v{XD(4 * h + i)}, {srd(sX)}, s{sXO} offen offset:{i * 1024} lds', 1))
    out.append((f's_add_u32 s{sWQO}, s{sWQO}, {64 * 8192}', 0))
    out.append((f's_add_u32 s{sW1O}, s{sW1O}, {64 * 3584}', 0))
    out.append((f's_add_u32 s{sXO}, s{sXO}, 128', 0))
    return out


def weave(a, mfmas, reads, extra, start=1, tail=4):
    reads, extra = list(reads), list(extra)
    n = len(mfmas)
    for g, m in enumerate(mfmas):
        a(m)
        if g < start:
            continue
        if g % 2 == 1 and reads:
            a(reads.pop(0))
            if reads:
                a(reads.pop(0))
        elif extra:
            text, isd = extra.pop(0)
            a(text)
            while not isd and extra and not extra[0][1]:
                a(extra.pop(0)[0])
        elif reads:
            a(reads.pop(0))
    assert not reads and not extra, (len(reads), len(extra))


def period(a, slot, extra, first=False, final=False):
    if not first:
        m1 = p1_mfmas(1)
        if final:
            a('s_waitcnt lgkmcnt(0)')
            weave(a, m1, [], extra)
            return
        a('s_waitcnt vmcnt(0) lgkmcnt(0)')
        a(m1[0])
        a('s_barrier')
        weave(a, m1[1:], p1_reads(slot, 0), extra, start=0)
        extra = []
    a('s_waitcnt lgkmcnt(0)')
    weave(a, p1_mfmas(0), p1_reads(slot, 1), extra, start=0)


def gen_k1():
    a = Asm()
    a(f'''
    .globl attn_kernel
    .p2align 8
    .type attn_kernel,@function
    attn_kernel:
    s_cmp_ge_u32 s2, 256
    s_cbranch_scc1 L1_end
    s_load_dwordx16 s[{sPTR}:{sPTR + 15}], s[0:1], 0
    s_load_dwordx4 s[{sPTR + 16}:{sPTR + 19}], s[0:1], 64
    s_load_dwordx2 s[{sWS}:{sWS + 1}], s[0:1], 96
    ''')
    pX, pK, pV, pWQ, pWO, pW1, pB1, pW2 = (sPTR + 2 * i for i in (0, 1, 2, 3, 4, 6, 7, 8))
    t = lambda i: T0 + i
    LN, G4, J16 = t(0), t(1), t(2)
    a(f'''
    v_lshrrev_b32 v{t(3)}, 6, v0
    v_and_b32 v{LN}, 63, v0
    s_and_b32 s{sHEAD}, s2, 7
    v_readfirstlane_b32 s{sWAVE}, v{t(3)}
    s_lshr_b32 s{sJ}, s2, 3
    s_and_b32 s{sT}, s{sJ}, 3
    s_lshl_b32 s{sHEAD}, s{sHEAD}, 2
    s_add_u32 s{sHEAD}, s{sHEAD}, s{sT}
    s_lshr_b32 s{sJ}, s{sJ}, 2
    v_lshrrev_b32 v{G4}, 4, v{LN}
    v_and_b32 v{J16}, 15, v{LN}
    v_lshlrev_b32 v{L16}, 4, v{LN}
    ''')
    a(f'''
    v_lshrrev_b32 v{t(3)}, 3, v{LN}
    v_and_b32 v{t(4)}, 7, v{LN}
    v_lshrrev_b32 v{t(5)}, 1, v{t(3)}
    v_xor_b32 v{t(5)}, v{t(5)}, v{t(4)}
    v_lshlrev_b32 v{t(5)}, 4, v{t(5)}
    v_lshl_add_u32 v{t(5)}, v{t(3)}, 10, v{t(5)}
    s_lshl_b32 s{sT}, s{sWAVE}, 16
    v_add_u32 v{t(5)}, s{sT}, v{t(5)}
    v_xor_b32 v{t(6)}, 64, v{t(5)}
    ''')
    for i in range(8):
        src = t(6) if i & 1 else t(5)
        a(f'v_add_u32 v{XD(i)}, {i * 8192 - (i & 3) * 1024}, v{src}')
    a(f'''
    v_lshlrev_b32 v{t(5)}, 2, v{G4}
    v_xor_b32 v{t(5)}, v{t(5)}, v{J16}
    v_lshlrev_b32 v{t(5)}, 4, v{t(5)}
    v_lshl_add_u32 v{t(5)}, v{G4}, 13, v{t(5)}
    s_lshl_b32 s{sT}, s{sWAVE}, 17
    v_add_u32 v{t(5)}, s{sT}, v{t(5)}
    ''')
    for i in range(4):
        a(f'v_add_u32 v{WQD(i)}, {i * 32768 - i * 1024}, v{t(5)}')
    a(f'''
    v_and_b32 v{t(5)}, 2, v{t(3)}
    v_xor_b32 v{t(5)}, v{t(5)}, v{t(4)}
    v_lshlrev_b32 v{t(5)}, 4, v{t(5)}
    v_mul_u32_u24 v{t(6)}, 3584, v{t(3)}
    s_mul_i32 s{sT}, s{sWAVE}, {16 * 3584}
    v_add_u32 v{t(6)}, s{sT}, v{t(6)}
    v_add_u32 v{W1D(0)}, v{t(6)}, v{t(5)}
    v_xor_b32 v{t(5)}, 64, v{t(5)}
    v_add_u32 v{t(6)}, {8 * 3584 - 1024}, v{t(6)}
    v_add_u32 v{W1D(1)}, v{t(6)}, v{t(5)}
    s_lshl_b32 s{sT}, s{sWAVE}, 13
    s_add_u32 s{sXM}, s{sT}, {XBASE}
    s_lshl_b32 s{sT}, s{sWAVE}, 12
    s_add_u32 s{sWM}, s{sT}, {WBASE}
    s_add_u32 s{sKM}, s{sT}, {KBASE}
    s_add_u32 s{sVM}, s{sT}, {VBASE}
    s_lshl_b32 s{sT}, s{sWAVE}, 11
    s_add_u32 s{sW1M}, s{sT}, {WBASE + 16384}
    s_mov_b32 s{sXO}, 0
    s_mov_b32 s{sWQO}, 0
    s_mov_b32 s{sW1O}, 0
    s_mov_b32 s{sMODE}, 0
    s_waitcnt lgkmcnt(0)
    ''')
    stamp(a, 0)
    a(f'''
    s_lshl_b32 s{sT}, s{sJ}, 18
    s_add_u32 s{sX}, s{pX}, s{sT}
    s_addc_u32 s{sX + 1}, s{pX + 1}, 0
    s_mov_b32 s{sX + 2}, 262144
    s_mov_b32 s{sX + 3}, 0x20000
    s_lshl_b32 s{sT}, s{sHEAD}, 8
    s_add_u32 s{sWQ}, s{pWQ}, s{sT}
    s_addc_u32 s{sWQ + 1}, s{pWQ + 1}, 0
    s_sub_u32 s{sWQ + 2}, 4194304, s{sT}
    s_mov_b32 s{sWQ + 3}, 0x20000
    s_lshl_b32 s{sT}, s{sHEAD}, 7
    s_add_u32 s{sW1}, s{pW1}, s{sT}
    s_addc_u32 s{sW1 + 1}, s{pW1 + 1}, 0
    s_sub_u32 s{sW1 + 2}, {512 * 3584}, s{sT}
    s_cmp_lt_u32 s{sHEAD}, 28
    s_cselect_b32 s{sW1 + 2}, s{sW1 + 2}, 0
    s_mov_b32 s{sW1 + 3}, 0x20000
    ''')
    for text, _ in p1_dma(0) + p1_dma(1):
        a(text)
        if text.startswith('s_add_u32 m0'):
            a('s_nop 0')
    a(f'''
    s_lshl_b32 s{sT}, s{sHEAD}, 19
    s_add_u32 s{sK}, s{pK}, s{sT}
    s_addc_u32 s{sK + 1}, s{pK + 1}, 0
    s_mov_b32 s{sK + 2}, 524288
    s_mov_b32 s{sK + 3}, 0x20000
    s_add_u32 s{sV}, s{pV}, s{sT}
    s_addc_u32 s{sV + 1}, s{pV + 1}, 0
    s_mov_b32 s{sV + 2}, 524288
    s_mov_b32 s{sV + 3}, 0x20000
    s_mov_b32 s{sWS + 2}, {WS_END}
    s_mov_b32 s{sWS + 3}, 0x20000
    s_lshl_b32 s{sAF}, s{sJ}, 2
    s_add_u32 s{sAF}, s{sAF}, s{sWAVE}
    s_mul_i32 s{sAF}, s{sAF}, {NB * 4096}
    ''')
    a(f'''
    v_lshrrev_b32 v{t(3)}, 1, v{J16}
    v_xor_b32 v{t(3)}, v{t(3)}, v{G4}
    v_lshlrev_b32 v{t(3)}, 4, v{t(3)}
    v_lshl_add_u32 v{t(3)}, v{J16}, 7, v{t(3)}
    v_add_u32 v{XA(0)}, s{sXM}, v{t(3)}
    v_xor_b32 v{XA(1)}, 64, v{XA(0)}
    v_lshrrev_b32 v{t(3)}, 2, v{J16}
    v_and_b32 v{t(4)}, 3, v{LN}
    v_lshl_add_u32 v{t(5)}, v{G4}, 3, v{t(3)}
    v_lshl_add_u32 v{t(6)}, v{t(3)}, 2, v{t(4)}
    v_lshlrev_b32 v{t(6)}, 4, v{t(6)}
    v_lshl_add_u32 v{t(6)}, v{t(5)}, 8, v{t(6)}
    v_add_u32 v{t(6)}, {WBASE}, v{t(6)}
    s_lshl_b32 s{sT}, s{sWAVE}, 6
    v_xor_b32 v{t(6)}, s{sT}, v{t(6)}
    ''')
    for ds in range(4):
        a(f'v_xor_b32 v{WQA(ds)}, {64 * ds}, v{t(6)}')
    a(f'''
    v_lshrrev_b32 v{t(6)}, 1, v{t(3)}
    v_and_b32 v{t(7)}, 1, v{G4}
    v_lshl_add_u32 v{t(6)}, v{t(7)}, 1, v{t(6)}
    v_lshlrev_b32 v{t(6)}, 5, v{t(6)}
    v_lshl_add_u32 v{t(6)}, v{t(4)}, 3, v{t(6)}
    v_lshl_add_u32 v{t(6)}, v{t(5)}, 7, v{t(6)}
    v_add_u32 v{t(6)}, {WBASE + 16384}, v{t(6)}
    s_and_b32 s{sT}, s{sWAVE}, 2
    s_lshl_b32 s{sT}, s{sT}, 5
    v_xor_b32 v{t(6)}, s{sT}, v{t(6)}
    ''')
    for nt in range(4):
        a(f'v_xor_b32 v{W1A(nt)}, {32 * nt}, v{t(6)}')
    a(f'''
    s_lshl_b32 s{sT}, s{sWAVE}, 2
    s_lshl_b32 s{sT2}, s{sWAVE}, 12
    v_add_u32 v{t(6)}, s{sT}, v{G4}
    v_xor_b32 v{t(6)}, v{t(6)}, v{J16}
    v_lshlrev_b32 v{t(6)}, 4, v{t(6)}
    v_lshl_add_u32 v{t(6)}, v{G4}, 8, v{t(6)}
    v_add_u32 v{VK}, s{sT2}, v{t(6)}
    s_and_b32 s{sT}, s{sWAVE}, 1
    s_lshl_b32 s{sT}, s{sT}, 1
    v_lshlrev_b32 v{t(6)}, 2, v{G4}
    v_or_b32 v{t(6)}, s{sT}, v{t(6)}
    v_xor_b32 v{t(6)}, v{t(6)}, v{J16}
    v_lshlrev_b32 v{t(6)}, 4, v{t(6)}
    v_lshl_add_u32 v{t(6)}, v{G4}, 8, v{t(6)}
    v_add_u32 v{VV}, s{sT2}, v{t(6)}
    v_lshl_add_u32 v{t(6)}, v{t(3)}, 4, v{t(4)}
    v_lshlrev_b32 v{t(6)}, 8, v{t(6)}
    v_xor_b32 v{t(8)}, v{G4}, v{J16}
    v_lshl_add_u32 v{t(6)}, v{t(8)}, 4, v{t(6)}
    s_lshl_b32 s{sT}, s{sWAVE}, 6
    v_xor_b32 v{t(6)}, s{sT}, v{t(6)}
    ''')
    for ds in range(4):
        a(f'v_xor_b32 v{AK(ds)}, {KBASE + 64 * ds}, v{t(6)}')
    a(f'''
    v_lshl_add_u32 v{t(6)}, v{G4}, 4, v{t(3)}
    v_lshlrev_b32 v{t(6)}, 8, v{t(6)}
    v_lshlrev_b32 v{t(8)}, 2, v{t(3)}
    v_lshl_add_u32 v{t(8)}, v{t(7)}, 1, v{t(8)}
    v_lshlrev_b32 v{t(8)}, 4, v{t(8)}
    v_lshl_add_u32 v{t(8)}, v{t(4)}, 3, v{t(8)}
    v_add_u32 v{t(6)}, v{t(6)}, v{t(8)}
    v_add_u32 v{t(6)}, {VBASE}, v{t(6)}
    ''')
    for dt in range(8):
        a(f'v_xor_b32 v{AV(dt)}, {32 * dt}, v{t(6)}')
    for i in range(4):
        a(f'v_mov_b32 v{ONES + i}, 0x3f803f80')
    a(f'''
    v_and_b32 v{t(6)}, 1, v{LN}
    v_cmp_eq_u32 vcc, 0, v{t(6)}
    v_mov_b32 v{t(6)}, 0x44444444
    v_mov_b32 v{t(8)}, 0xeeeeeeee
    v_cndmask_b32 v{IDX}, v{t(8)}, v{t(6)}, vcc
    ''')
    for i in range(192):
        a(f'v_mov_b32 v{i}, 0')
    for i in range(128):
        a(f'v_accvgpr_write_b32 a{i}, 0')
    a('s_waitcnt vmcnt(14) lgkmcnt(0)')
    a('s_barrier')
    stamp(a, 1)
    for x in p1_reads(0, 0):
        a(x)
    period(a, 0, [], first=True)
    a(f's_mov_b32 s{sCNT}, 0')
    a('L1_proj:')
    period(a, 1, p1_dma(0))
    period(a, 0, p1_dma(1))
    a(f's_add_u32 s{sCNT}, s{sCNT}, 1')
    a(f's_cmp_lt_u32 s{sCNT}, 3')
    a('s_cbranch_scc1 L1_proj')
    ex = []
    for kind, tile in [('K', 0), ('V', 0), ('K', 1)]:
        ex += [(x, x.startswith('buffer')) for x in kv_dma(kind, tile)]
    period(a, 1, ex)
    rl = []
    rl.append(f's_lshl_b32 s{sRL}, s2, 2')
    rl.append(f's_add_u32 s{sRL}, s{sRL}, s{sWAVE}')
    rl.append(f's_cmp_lt_u32 s{sRL}, 512')
    rl.append(f's_cselect_b32 s{sAUX}, s{pWO}, s{pW2}')
    rl.append(f's_cselect_b32 s{sAUX + 1}, s{pWO + 1}, s{pW2 + 1}')
    rl.append(f's_mov_b32 s{sAUX + 2}, {1792 * 1024}')
    rl.append(f's_cselect_b32 s{sAUX + 2}, 4194304, s{sAUX + 2}')
    rl.append(f's_mov_b32 s{sAUX + 3}, 0x20000')
    rl.append(f's_cselect_b32 s{sT2}, 0, 512')
    rl.append(f's_sub_u32 s{sT2}, s{sRL}, s{sT2}')
    rl.append(f's_lshr_b32 s{sT}, s{sT2}, 2')
    rl.append(f's_lshl_b32 s{sT}, s{sT}, 15')
    rl.append(f's_and_b32 s{sT2}, s{sT2}, 3')
    rl.append(f's_lshl_b32 s{sT2}, s{sT2}, 8')
    rl.append(f's_add_u32 s{sT}, s{sT}, s{sT2}')
    for x in rl:
        a(x)
    a(f'v_lshlrev_b32 v{t(3)}, 4, v{J16}')
    a(f'v_lshl_add_u32 v{t(3)}, v{G4}, 10, v{t(3)}')
    ex = []
    for i in range(8):
        ex.append((f's_add_u32 m0, s{sXM}, {RLBASE - XBASE + i * 1024}', 0))
        ex.append((f'buffer_load_dwordx4 v{t(3)}, {srd(sAUX)}, s{sT} offen lds', 1))
        ex.append((f's_add_u32 s{sT}, s{sT}, 4096', 0))
    period(a, 0, ex, final=True)
    stamp(a, 2)
    B1 = lambda i: XD(0) + 2 * i
    a(f'''
    s_lshl_b32 s{sT}, s{sHEAD}, 7
    s_add_u32 s{sAUX}, s{pB1}, s{sT}
    s_addc_u32 s{sAUX + 1}, s{pB1 + 1}, 0
    s_sub_u32 s{sAUX + 2}, 3584, s{sT}
    s_cmp_lt_u32 s{sHEAD}, 28
    s_cselect_b32 s{sAUX + 2}, s{sAUX + 2}, 0
    s_and_b32 s{sT}, s{sWAVE}, 2
    s_lshl_b32 s{sT}, s{sT}, 5
    v_lshlrev_b32 v{t(3)}, 3, v{G4}
    v_xor_b32 v{t(4)}, s{sT}, v{t(3)}
    v_xor_b32 v{t(5)}, 64, v{t(4)}
    buffer_load_dwordx2 {vr(B1(0), 2)}, v{t(4)}, {srd(sAUX)}, 0 offen
    buffer_load_dwordx2 {vr(B1(1), 2)}, v{t(4)}, {srd(sAUX)}, 0 offen offset:32
    buffer_load_dwordx2 {vr(B1(2), 2)}, v{t(5)}, {srd(sAUX)}, 0 offen
    buffer_load_dwordx2 {vr(B1(3), 2)}, v{t(5)}, {srd(sAUX)}, 0 offen offset:32
    ''')
    a(f'''
    v_lshlrev_b32 v{t(3)}, 2, v{J16}
    s_lshl_b32 s{sT}, s{sWAVE}, 7
    s_add_u32 s{sT}, s{sT}, {CSBASE}
    v_add_u32 v{t(4)}, s{sT}, v{t(3)}
    s_lshr_b32 s{sT}, s{sWAVE}, 1
    s_lshl_b32 s{sT}, s{sT}, 7
    s_add_u32 s{sT}, s{sT}, {CSBASE + 512}
    v_add_u32 v{t(5)}, s{sT}, v{t(3)}
    ''')
    for i in range(4):
        a(f'v_accvgpr_read_b32 v{t(6)}, a{CS(i)}')
        a(f'v_accvgpr_read_b32 v{t(7)}, a{CS(i) + 1}')
        a(f'v_add_f32 v{t(8 + i)}, v{t(6)}, v{t(7)}')
        a(f'ds_write_b32 v{t(4 + (i >> 1))}, v{t(8 + i)} offset:{(i & 1) * 64}')
    NMU = lambda qt: WQD(0) + qt
    AQ = lambda qt: WQA(0) + qt
    AH = lambda qt: W1A(0) + qt
    a(f'''
    v_and_b32 v{t(3)}, 3, v{J16}
    v_lshrrev_b32 v{t(4)}, 2, v{J16}
    v_cmp_eq_u32 s[50:51], v{t(4)}, v{G4}
    ''')
    CQ = 1.4426950408889634 / (128 ** 0.5)
    import struct
    fb = lambda x: hex(struct.unpack('<I', struct.pack('<f', x))[0])
    for qt in range(4):
        for r in range(4):
            a(f'v_accvgpr_read_b32 v{t(5 + r)}, a{SXX(qt) + r}')
        a(f'v_accvgpr_read_b32 v{t(9)}, a{SX(qt)}')
        a(f'v_accvgpr_read_b32 v{t(10)}, a{SX(qt) + 1}')
        for r in range(1, 4):
            a(f'v_cmp_eq_u32 vcc, {r}, v{t(3)}')
            a('s_nop 1')
            a(f'v_cndmask_b32 v{t(5)}, v{t(5)}, v{t(5 + r)}, vcc')
        a(f'v_cndmask_b32 v{t(5)}, 0, v{t(5)}, s[50:51]')
        xlane(a, 'v_add_f32', t(5), t(6))
        a(f'''
        v_add_f32 v{t(9)}, v{t(9)}, v{t(10)}
        v_mul_f32 v{NMU(qt)}, {fb(-1.0 / 512)}, v{t(9)}
        v_mul_f32 v{t(5)}, {fb(1.0 / 512)}, v{t(5)}
        v_fma_f32 v{t(5)}, -v{NMU(qt)}, v{NMU(qt)}, v{t(5)}
        v_max_f32 v{t(5)}, 0, v{t(5)}
        v_add_f32 v{t(6)}, {fb(1e-5)}, v{t(5)}
        v_rsq_f32 v{t(6)}, v{t(6)}
        s_nop 0
        v_mul_f32 v{t(7)}, v{t(6)}, v{t(6)}
        v_mul_f32 v{t(7)}, v{t(7)}, v{t(5)}
        v_add_f32 v{t(7)}, {fb(1e-5)}, v{t(7)}
        v_rsq_f32 v{t(7)}, v{t(7)}
        v_mul_f32 v{AQ(qt)}, {fb(CQ)}, v{t(6)}
        v_mul_f32 v{AH(qt)}, v{t(6)}, v{t(7)}
        ''')
    a('s_waitcnt lgkmcnt(0)')
    a('s_barrier')
    for kind, tile in [('V', 1), ('K', 2), ('V', 2), ('K', 3)]:
        for x in kv_dma(kind, tile):
            a(x)
    CSQ, CSH = XA(0), XA(1)
    a(f'''
    v_lshlrev_b32 v{t(3)}, 4, v{G4}
    s_lshl_b32 s{sT}, s{sWAVE}, 7
    v_xor_b32 v{CSQ}, s{sT}, v{t(3)}
    s_lshr_b32 s{sT}, s{sWAVE}, 1
    s_lshl_b32 s{sT}, s{sT}, 7
    v_xor_b32 v{CSH}, s{sT}, v{t(3)}
    ''')
    CB = t(4)
    assert CB % 4 == 0
    for ds in range(4):
        a(f'v_xor_b32 v{t(3)}, {128 * ds}, v{CSQ}')
        a(f'v_add_u32 v{t(3)}, {CSBASE}, v{t(3)}')
        a(f'ds_read_b128 {vr(CB, 4)}, v{t(3)}')
        a(f'ds_read_b128 {vr(CB + 4, 4)}, v{t(3)} offset:64')
        a('s_waitcnt lgkmcnt(0)')
        for qt in range(4):
            b = ACCQ(ds, qt, 0)
            for i in range(8):
                a(f'v_fma_f32 v{b + i}, v{NMU(qt)}, v{CB + i}, v{b + i}')
            for i in range(8):
                a(f'v_mul_f32 v{b + i}, v{AQ(qt)}, v{b + i}')
            for i in range(4):
                a(f'v_cvt_pk_bf16_f32 v{Q(qt, ds) + i}, v{b + 2 * i}, v{b + 2 * i + 1}')
    K1 = -2.0 * 0.7978845608028654 * 1.4426950408889634
    a(f's_mov_b32 s50, {fb(K1 * 0.044715)}')
    a(f'v_mov_b32 v{t(12)}, {fb(K1)}')
    a(f'''
    s_lshl_b32 s{sT}, s{sHEAD}, 1
    s_lshr_b32 s{sT2}, s{sWAVE}, 1
    s_add_u32 s{sT}, s{sT}, s{sT2}
    s_add_u32 s{sT}, s{sT}, 128
    s_lshl_b32 s{sT}, s{sT}, 12
    s_xor_b32 s{sT2}, s{sT}, 4096
    s_add_u32 s{sT}, s{sT}, s{sAF}
    s_add_u32 s{sT2}, s{sT2}, s{sAF}
    s_cmp_lt_u32 s{sHEAD}, 28
    s_cselect_b32 s{sWS + 2}, {WS_END}, 0
    s_waitcnt vmcnt(16)
    ''')
    BF = 64
    for i in range(4):
        for h in range(2):
            a(f'v_lshlrev_b32 v{BF + 4 * i + 2 * h}, 16, v{B1(i) + h}')
            a(f'v_and_b32 v{BF + 4 * i + 2 * h + 1}, 0xffff0000, v{B1(i) + h}')
    for m in range(2):
        a(f'v_xor_b32 v{t(3)}, {128 * m}, v{CSH}')
        a(f'v_add_u32 v{t(3)}, {CSBASE + 512}, v{t(3)}')
        a(f'ds_read_b128 {vr(CB, 4)}, v{t(3)}')
        a(f'ds_read_b128 {vr(CB + 4, 4)}, v{t(3)} offset:64')
        a('s_waitcnt lgkmcnt(0)')
        for qt in range(4):
            b = ACCH(m, qt, 0)
            w = 80
            pk = 96 + (m * 4 + qt) * 4
            for i in range(8):
                a(f'v_fma_f32 v{b + i}, v{NMU(qt)}, v{CB + i}, v{b + i}')
            for i in range(8):
                a(f'v_fma_f32 v{b + i}, v{AH(qt)}, v{b + i}, v{BF + 8 * m + i}')
            for i in range(8):
                a(f'v_mul_f32 v{w + i}, v{b + i}, v{b + i}')
            for i in range(8):
                a(f'v_fma_f32 v{w + i}, v{w + i}, s50, v{t(12)}')
            for i in range(8):
                a(f'v_mul_f32 v{w + i}, v{w + i}, v{b + i}')
            for i in range(8):
                a(f'v_exp_f32 v{w + i}, v{w + i}')
            for i in range(8):
                a(f'v_add_f32 v{w + i}, 1.0, v{w + i}')
            for i in range(8):
                a(f'v_rcp_f32 v{w + i}, v{w + i}')
            for i in range(8):
                a(f'v_mul_f32 v{b + i}, v{b + i}, v{w + i}')
            for i in range(4):
                a(f'v_cvt_pk_bf16_f32 v{pk + i}, v{b + 2 * i}, v{b + 2 * i + 1}')
            a(f'buffer_store_dwordx4 {vr(pk, 4)}, v{L16}, {srd(sWS)}, s{sT if m == 0 else sT2} offen offset:{qt * 1024}')
    a(f'''
    v_lshrrev_b32 v{t(3)}, 2, v{J16}
    v_lshl_add_u32 v{t(3)}, v{G4}, 2, v{t(3)}
    v_lshlrev_b32 v{t(3)}, 8, v{t(3)}
    v_and_b32 v{t(13)}, 3, v{LN}
    v_lshl_add_u32 v{t(3)}, v{t(13)}, 5, v{t(3)}
    s_add_u32 s{sT}, s{sXM}, {RLBASE - XBASE}
    v_add_u32 v{t(3)}, s{sT}, v{t(3)}
    ''')
    RB = 128
    for cl in range(2):
        for nt in range(4):
            for u in range(2):
                a(f'ds_read_b64_tr_b16 {vr(RB + (cl * 4 + nt) * 4 + 2 * u, 2)}, v{t(3)} offset:{u * 4096 + cl * 128 + nt * 8}')
    a(f'''
    s_lshr_b32 s{sT}, s{sRL}, 2
    s_and_b32 s{sT2}, s{sRL}, 3
    s_mul_i32 s{sT2}, s{sT2}, {2 * NB}
    s_add_u32 s{sT}, s{sT}, s{sT2}
    s_lshl_b32 s{sT}, s{sT}, 12
    s_add_u32 s{sT}, s{sT}, {WS_WF}
    s_add_u32 s{sT2}, s{sT}, {NB * 4096}
    s_cmp_lt_u32 s{sRL}, 736
    s_cselect_b32 s{sWS + 2}, {WS_END}, 0
    s_waitcnt lgkmcnt(0)
    ''')
    for cl in range(2):
        for nt in range(4):
            a(f'buffer_store_dwordx4 {vr(RB + (cl * 4 + nt) * 4, 4)}, v{L16}, {srd(sWS)}, s{sT if cl == 0 else sT2} offen offset:{nt * 1024}')
    a(f's_mov_b32 s{sWS + 2}, {WS_END}')
    for qt in range(4):
        a(f'v_mov_b32 v{NEGM(qt)}, 0x7f800000')
    for i in range(48):
        a(f'v_accvgpr_write_b32 a{i}, 0')
    a('s_waitcnt vmcnt(0)')
    a('L1_attn:')
    stamp(a, 3)
    a('s_barrier')
    for i in range(16):
        a(f'v_accvgpr_write_b32 a{LACC(0) + i}, 0')
    for x in k_reads(0, 0):
        a(x)
    a(f'v_add_u32 v{VK}, 16384, v{VK}')
    a(f's_mov_b32 s{sOFF}, {3 * 16384}')
    a('s_waitcnt lgkmcnt(0)')
    for x in qk_mfmas(0, czero=True):
        a(x)
    a('s_nop 7')
    for qt in range(4):
        b = S(0, 0, qt)
        a(f'v_max3_f32 v{t(3)}, v{b}, v{b + 1}, v{b + 2}')
        a(f'v_max3_f32 v{t(3)}, v{t(3)}, v{b + 3}, v{b + 4}')
        a(f'v_max3_f32 v{t(3)}, v{t(3)}, v{b + 5}, v{b + 6}')
        a(f'v_max_f32 v{t(3)}, v{t(3)}, v{b + 7}')
        xlane(a, 'v_max_f32', t(3), t(4))
        a(f'v_min_f32_e64 v{NEGM(qt)}, v{NEGM(qt)}, -v{t(3)}')
        for i in range(1, 4):
            a(f'v_mov_b32 v{NEGM(qt) + i}, v{NEGM(qt)}')
        for i in range(8):
            a(f'v_add_f32 v{b + i}, v{b + i}, v{NEGM(qt)}')
    iteration(a, 3, only_tail=True)
    a(f's_mov_b32 s{sCNT}, 0')
    stamp(a, 4)
    a('s_waitcnt lgkmcnt(0)')
    a('.p2align 6')
    a('L1_loop:')
    for u in range(3):
        iteration(a, u)
    a(f's_cmp_eq_u32 s{sCNT}, 7')
    a('s_cbranch_scc1 L1_tail')
    iteration(a, 3)
    a(f's_add_u32 s{sCNT}, s{sCNT}, 1')
    a('s_branch L1_loop')
    a('L1_tail:')
    iteration(a, 3, last=True)
    stamp(a, 5)
    CHK = 176
    a(f's_lshl_b32 s{sT}, s{sHEAD}, 14')
    a(f's_add_u32 s{sT}, s{sT}, s{sAF}')
    for i in range(4):
        a(f'v_mov_b32 v{CHK + i}, 0')
    a(f'v_mov_b32 v{t(5)}, 0')
    a('s_nop 7')
    for qt in range(4):
        a(f'v_accvgpr_read_b32 v{t(3)}, a{LACC(qt)}')
        a(f'v_accvgpr_read_b32 v{t(4)}, a{LACC(qt) + 1}')
        tb, pb = 64, 96 + (qt & 1) * 16
        for i in range(32):
            a(f'v_accvgpr_read_b32 v{tb + i}, a{O(qt, 0) + i}')
            if i == 0:
                a(f'v_add_f32 v{t(3)}, v{t(3)}, v{t(4)}')
            if i == 2:
                a(f'v_max_f32 v{t(5)}, v{t(5)}, v{t(3)}')
                a(f'v_rcp_f32 v{t(3)}, v{t(3)}')
        for i in range(32):
            a(f'v_mul_f32 v{tb + i}, v{tb + i}, v{t(3)}')
        if qt >= 2:
            a('s_waitcnt vmcnt(4)')
        for i in range(16):
            a(f'v_cvt_pk_bf16_f32 v{pb + i}, v{tb + 2 * i}, v{tb + 2 * i + 1}')
        for m in range(4):
            a(f's_add_u32 s{sT2}, s{sT}, {m * 4096}')
            a(f'buffer_store_dwordx4 {vr(pb + 4 * m, 4)}, v{L16}, {srd(sWS)}, s{sT2} offen offset:{qt * 1024}')
        a(f'{SM} {vr(CHK, 4)}, {vr(ONES, 4)}, {vr(pb, 8)}, v{IDX}')
        a(f'{SM} {vr(CHK, 4)}, {vr(ONES, 4)}, {vr(pb + 8, 8)}, v{IDX}')
    a(f'''
    s_cmp_lg_u32 s{sMODE}, 0
    s_cbranch_scc1 L1_done
    s_nop 11
    v_add_f32 v{t(3)}, v{CHK}, v{CHK + 1}
    v_mov_b32 v{t(4)}, 0x53800000
    v_fma_f32 v{t(5)}, v{t(3)}, 0, v{t(5)}
    s_lshl_b32 s{sT}, s{sWAVE}, 2
    s_add_u32 s{sT}, s{sT}, {FLAG}
    v_cmp_nlt_f32 vcc, v{t(5)}, v{t(4)}
    v_mov_b32 v{t(6)}, s{sT}
    s_nop 3
    s_or_b32 s{sT2}, vcc_lo, vcc_hi
    v_mov_b32 v{t(7)}, s{sT2}
    ds_write_b32 v{t(6)}, v{t(7)}
    v_mov_b32 v{t(6)}, {FLAG}
    s_waitcnt lgkmcnt(0)
    s_barrier
    ds_read_b128 {vr(t(8), 4)}, v{t(6)}
    s_waitcnt lgkmcnt(0)
    v_or3_b32 v{t(7)}, v{t(8)}, v{t(9)}, v{t(10)}
    v_or_b32 v{t(7)}, v{t(7)}, v{t(11)}
    s_nop 1
    v_readfirstlane_b32 s{sMODE}, v{t(7)}
    s_nop 3
    s_cmp_eq_u32 s{sMODE}, 0
    s_cbranch_scc1 L1_done
    ''')
    a(f'v_subrev_u32 v{VK}, 16384, v{VK}')
    for qt in range(4):
        a(f'v_mov_b32 v{NEGM(qt) + 1}, 0xff800000')
    a(f's_mov_b32 s{sOFF}, 0')
    a('L1_maxloop:')
    a('s_waitcnt vmcnt(0) lgkmcnt(0)')
    a('s_barrier')
    a(f's_mov_b32 m0, s{sKM}')
    a('s_nop 0')
    for i in range(4):
        a(f'buffer_load_dwordx4 v{VK}, {srd(sK)}, s{sOFF} offen offset:{i * 1024} lds')
    a('s_waitcnt vmcnt(0)')
    a('s_barrier')
    for s in range(2):
        for x in k_reads(0, s):
            a(x)
        a('s_waitcnt lgkmcnt(0)')
        for x in qk_mfmas(0, czero=True):
            a(x)
        a('s_nop 7')
        for qt in range(4):
            b = S(0, 0, qt)
            for i in range(0, 8, 2):
                a(f'v_max3_f32 v{NEGM(qt) + 1}, v{NEGM(qt) + 1}, v{b + i}, v{b + i + 1}')
    a(f's_add_u32 s{sOFF}, s{sOFF}, 16384')
    a(f's_cmp_lt_u32 s{sOFF}, 524288')
    a('s_cbranch_scc1 L1_maxloop')
    for qt in range(4):
        xlane(a, 'v_max_f32', NEGM(qt) + 1, t(4))
        a(f'v_sub_f32 v{NEGM(qt)}, 0, v{NEGM(qt) + 1}')
    a('s_barrier')
    for kind, tile in [('K', 0), ('V', 0), ('K', 1), ('V', 1), ('K', 2), ('V', 2), ('K', 3)]:
        for x in kv_dma(kind, tile):
            a(x)
    for i in range(128):
        a(f'v_accvgpr_write_b32 a{i}, 0')
    a('s_waitcnt vmcnt(0)')
    a('s_branch L1_attn')
    a('L1_done:')
    dump_stamps(a, 7, WS_T)
    a('L1_end:')
    a('s_endpgm')
    return a


def gen_k2():
    a = Asm()
    D = 4
    AS = lambda qt, nt: (qt * 4 + nt) * 4
    AG = lambda qt, nt: 64 + (qt * 4 + nt) * 4
    FW = lambda sl, nt: 32 + sl * 32 + nt * 4
    FA = lambda sl, qt: 32 + sl * 32 + 16 + qt * 4
    sA, sW = 20, 21
    a(f'''
    .globl oproj_kernel
    .p2align 8
    .type oproj_kernel,@function
    oproj_kernel:
    s_cmp_ge_u32 s2, 256
    s_cbranch_scc1 L2_end
    s_load_dwordx2 s[4:5], s[0:1], 0
    s_load_dwordx4 s[16:19], s[0:1], 72
    s_load_dwordx2 s[{sWS}:{sWS + 1}], s[0:1], 96
    v_lshrrev_b32 v1, 6, v0
    v_and_b32 v0, 63, v0
    s_and_b32 s22, s2, 7
    v_readfirstlane_b32 s{sWAVE}, v1
    s_lshr_b32 s23, s2, 3
    s_lshr_b32 s24, s23, 3
    s_lshl_b32 s22, s22, 2
    s_add_u32 s22, s22, s24
    s_and_b32 s23, s23, 7
    v_lshlrev_b32 v2, 4, v0
    s_mul_i32 s{sA}, s22, {NB * 4096}
    s_mul_i32 s{sW}, s23, {NB * 4096}
    s_add_u32 s{sW}, s{sW}, {WS_WF}
    s_lshl_b32 s24, s{sWAVE}, 17
    s_add_u32 s{sA}, s{sA}, s24
    s_add_u32 s{sW}, s{sW}, s24
    s_mul_i32 s25, s{sWAVE}, {18 * 4096}
    s_sub_u32 s25, {96 * 4096}, s25
    s_waitcnt lgkmcnt(0)
    s_mov_b32 s{sWS + 2}, {WS_END}
    s_mov_b32 s{sWS + 3}, 0x20000
    ''')
    stamp(a, 0)

    def loads(blk):
        sl = blk % D
        out = []
        if blk == 32:
            out.append(f's_add_u32 s{sA}, s{sA}, s25')
            out.append(f's_add_u32 s{sW}, s{sW}, s25')
        for i in range(4):
            out.append(f'buffer_load_dwordx4 {vr(FW(sl, i), 4)}, v2, {srd(sWS)}, s{sW} offen offset:{i * 1024}')
        for i in range(4):
            out.append(f'buffer_load_dwordx4 {vr(FA(sl, i), 4)}, v2, {srd(sWS)}, s{sA} offen offset:{i * 1024}')
        out.append(f's_add_u32 s{sA}, s{sA}, 4096')
        out.append(f's_add_u32 s{sW}, s{sW}, 4096')
        return out
    NBLK = 46
    for b in range(D - 1):
        for x in loads(b):
            a(x)
    a(f'''
    s_mov_b32 s6, 2097152
    s_mov_b32 s7, 0x20000
    s_mov_b32 s8, s16
    s_mov_b32 s9, s17
    s_mov_b32 s10, 1024
    s_mov_b32 s11, 0x20000
    s_mov_b32 s28, s18
    s_mov_b32 s29, s19
    s_mov_b32 s30, 2097152
    s_mov_b32 s31, 0x20000
    v_and_b32 v3, 15, v0
    v_lshrrev_b32 v4, 4, v0
    v_lshlrev_b32 v5, 5, v4
    s_lshl_b32 s24, s23, 7
    v_add_u32 v5, s24, v5
    s_lshl_b32 s24, s22, 2
    s_add_u32 s24, s24, s{sWAVE}
    s_lshl_b32 s24, s24, 14
    v_lshl_add_u32 v6, v3, 10, v5
    v_add_u32 v6, s24, v6
    ''')
    for i in range(128):
        a(f'v_accvgpr_write_b32 a{i}, 0')
    for b in range(NBLK):
        nxt = loads(b + D - 1) if b + D - 1 < NBLK else []
        if b == NBLK - D + 1:
            nxt = [f'buffer_load_dwordx4 v[8:11], v6, s[4:7], 0 offen', f'buffer_load_dwordx4 v[12:15], v6, s[4:7], 0 offen offset:16',
                   f'buffer_load_dwordx4 v[16:19], v5, s[8:11], 0 offen', f'buffer_load_dwordx4 v[20:23], v5, s[8:11], 0 offen offset:16']
        later = min(D - 2, NBLK - 1 - b) * 8 + (4 if b > NBLK - D + 1 else 0)
        a(f's_waitcnt vmcnt({later})')
        sl = b % D
        acc = AS if b < 32 else AG
        k = 0
        for qt in range(4):
            for nt in range(4):
                a(f'{MF} {ar(acc(qt, nt), 4)}, {vr(FW(sl, nt), 4)}, {vr(FA(sl, qt), 4)}, {ar(acc(qt, nt), 4)}')
                if nxt:
                    a(nxt.pop(0))
        assert not nxt
    stamp(a, 1)
    a('s_nop 7')
    a(f's_lshl_b32 s24, s{sWAVE}, 15')
    a('v_add_u32 v7, s24, v2')
    for qt in range(4):
        for br in range(2):
            for nt in range(4):
                src = (AS if br == 0 else AG)(qt, nt)
                a(f'ds_write_b128 v7, {ar(src, 4)} offset:{((qt * 2 + br) * 4 + nt) * 1024}')
    a(f's_lshl_b32 s24, s{sWAVE}, 13')
    a('v_add_u32 v7, s24, v2')
    a('v_add_u32 v24, 65536, v7')
    a('s_waitcnt lgkmcnt(0)')
    a('s_barrier')
    R = lambda sw, i: 32 + sw * 32 + i * 4
    for sw in range(4):
        for i in range(8):
            a(f'ds_read_b128 {vr(R(sw, i), 4)}, v{7 if sw < 2 else 24} offset:{(sw & 1) * 32768 + i * 1024}')
        if sw == 1:
            a('s_waitcnt lgkmcnt(0)')
    for i in range(32):
        a(f'v_add_f32 v{32 + i}, v{32 + i}, v{64 + i}')
    a('s_waitcnt vmcnt(0) lgkmcnt(0)')
    for i in range(32):
        a(f'v_add_f32 v{96 + i}, v{96 + i}, v{128 + i}')
    for i in range(32):
        a(f'v_add_f32 v{32 + i}, v{32 + i}, v{96 + i}')
    for i in range(8):
        a(f'v_lshlrev_b32 v{64 + 2 * i}, 16, v{16 + i}')
        a(f'v_and_b32 v{65 + 2 * i}, 0xffff0000, v{16 + i}')
        a(f'v_lshlrev_b32 v{80 + 2 * i}, 16, v{8 + i}')
        a(f'v_and_b32 v{81 + 2 * i}, 0xffff0000, v{8 + i}')
    for i in range(16):
        a(f'v_add_f32 v{48 + i}, v{48 + i}, v{64 + i}')
    for i in range(16):
        a(f'v_mul_f32 v{64 + i}, 0xbfb8aa3b, v{48 + i}')
    for i in range(16):
        a(f'v_exp_f32 v{64 + i}, v{64 + i}')
    for i in range(16):
        a(f'v_add_f32 v{64 + i}, 1.0, v{64 + i}')
    for i in range(16):
        a(f'v_rcp_f32 v{64 + i}, v{64 + i}')
    for i in range(16):
        a(f'v_mul_f32 v{48 + i}, v{48 + i}, v{64 + i}')
    for i in range(16):
        a(f'v_fma_f32 v{80 + i}, v{32 + i}, v{48 + i}, v{80 + i}')
    for i in range(8):
        a(f'v_cvt_pk_bf16_f32 v{96 + i}, v{80 + 2 * i}, v{81 + 2 * i}')
    a('buffer_store_dwordx4 v[96:99], v6, s[28:31], 0 offen')
    a('buffer_store_dwordx4 v[100:103], v6, s[28:31], 0 offen offset:16')
    dump_stamps(a, 3, WS_T + (1 << 20))
    a('L2_end:')
    a('s_endpgm')
    return a


def gen():
    k1, k2 = gen_k1(), gen_k2()
    for k in (k1, k2):
        for e in k.check():
            print('HAZARD', e, file=sys.stderr)
    hdr = (f'; @launch kernel=attn_kernel grid=(256,1,1) block=(256,1,1) lds={LDS1}\n'
           '; @launch kernel=oproj_kernel grid=(256,1,1) block=(256,1,1) lds=131072\n'
           '.amdgcn_target "amdgcn-amd-amdhsa--gfx950"\n.text\n')
    return hdr + k1.text() + k2.text() + kd('attn_kernel', 512, 102, 256) + kd('oproj_kernel', 288, 102, 160)


if __name__ == '__main__':
    out = sys.argv[1]
    for kv in sys.argv[2:]:
        k, v = kv.split('=')
        OPT[k] = eval(v)
    open(out, 'w').write(gen())
```
